```python
import torch

def _softmax(x, axis=-1):
    return torch.softmax(x, dim=axis)
def _gelu(x):
    return torch.nn.functional.gelu(x, approximate="tanh")
def _silu(x):
    return torch.nn.functional.silu(x)
def _sigmoid(x):
    return torch.sigmoid(x)
def _layernorm(x, axis=-1, eps=1e-5):
    m = x.mean(dim=axis, keepdim=True)
    v = x.var(dim=axis, keepdim=True, unbiased=False)
    return (x - m) / torch.sqrt(v + eps)
def _scatter_add(tgt, idx, src, axis=0):
    return tgt.clone().index_add_(axis, idx, src)
def _segment_sum(src, seg, n):
    out = torch.zeros((n,) + src.shape[1:], dtype=src.dtype)
    return out.index_add_(0, seg, src)
def _pad(x, pw):
    flat = tuple(v for pair in reversed(pw) for v in pair)
    return torch.nn.functional.pad(x, flat)

kernel_name = 'sequential_preLN__sliding_block_cached__dense_activation_silu__decode'

def setup_inputs():

    _w = (lambda a: (lambda t: t.to(torch.bfloat16) if t.is_floating_point() else t)(torch.as_tensor(a)))
    def _A_setup():
        B, Sq, D = 1, 1, 576
        Hq, Hkv, Sk, Dh = 32, 16, 8192, 128
        assert Hq % Hkv == 0, (Hq, Hkv)
        return {
            "x": _w((lambda *s: torch.randn(*s, dtype=torch.bfloat16) * 0.05)(B, Sq, D)),
            "k_cache": _w((lambda *s: torch.randn(*s, dtype=torch.bfloat16) * 3.2)(B, Hkv, Sk, Dh)),
            "v_cache": _w((lambda *s: torch.randn(*s, dtype=torch.bfloat16) * 0.8)(B, Hkv, Sk, Dh)),
            "wq": _w((lambda *s: torch.randn(*s, dtype=torch.bfloat16) * 3.2)(D, Hq * Dh) * (D ** -0.5)),
            "wo": _w((lambda *s: torch.randn(*s, dtype=torch.bfloat16) * 0.8)(Hq * Dh, D) * ((Hq * Dh) ** -0.5)),
        }
    _A_in = _A_setup()

    def _B_setup():
        B, S, D, F = 1, 1, 576, 4608
        return {
            "x": _w((lambda *s: torch.randn(*s, dtype=torch.bfloat16) * 0.05)(B, S, D)),
            "w1": _w((lambda *s: torch.randn(*s, dtype=torch.bfloat16) * 3.2)(D, F) * (D ** -0.5)),
            "w2": _w((lambda *s: torch.randn(*s, dtype=torch.bfloat16) * 0.4)(F, D) * (F ** -0.5)),
        }
    _B_in = _B_setup()

    return {
        "A_x": _A_in["x"],
        "A_k_cache": _A_in["k_cache"],
        "A_v_cache": _A_in["v_cache"],
        "A_wq": _A_in["wq"],
        "A_wo": _A_in["wo"],
        "B_x": _B_in["x"],
        "B_w1": _B_in["w1"],
        "B_w2": _B_in["w2"],
    }

def reference(A_x, A_k_cache, A_v_cache, A_wq, A_wo, B_x, B_w1, B_w2):
    def _A_ref(x, k_cache, v_cache, wq, wo):
        B, Sq, D = x.shape
        Hq, Dh = 32, 128
        Hkv, Sk = k_cache.shape[1], k_cache.shape[2]
        W = min(4096, max(256, Sk // 4))
        rep = Hq // Hkv
        q = (lambda x, *d: x.permute(*d))((x @ wq).reshape(B, Sq, Hq, Dh), 0, 2, 1, 3)
        k = (lambda x, n, axis: torch.repeat_interleave(x, n, dim=axis))(k_cache[:, :, Sk - W:, :], rep, axis=1)
        v = (lambda x, n, axis: torch.repeat_interleave(x, n, dim=axis))(v_cache[:, :, Sk - W:, :], rep, axis=1)
        scores = torch.einsum("bhqd,bhkd->bhqk", q, k) * (Dh ** -0.5)
        p = _softmax(scores, axis=-1)
        o = torch.einsum("bhqk,bhkd->bhqd", p, v)
        return (lambda x, *d: x.permute(*d))(o, 0, 2, 1, 3).reshape(B, Sq, Hq * Dh) @ wo

    def _B_ref(x, w1, w2):
        h = torch.einsum("bsd,df->bsf", x, w1)
        h = _silu(h)
        out = torch.einsum("bsf,fd->bsd", h, w2)
        return out

    x = A_x
    h = x + _A_ref(_layernorm(x, axis=-1), A_k_cache, A_v_cache, A_wq, A_wo)
    h2 = h + _B_ref(_layernorm(h, axis=-1), B_w1, B_w2)
    return h2
```

```python
NAME = "sequential_preLN__sliding_block_cached__dense_activation_silu__decode"
HEADER = """; Kernarg layout for this problem (88 bytes, ptrs only, base s[0:1]):
"""
SIZES = dict(x=1152, k=33554432, v=33554432, wq=576*4096*2, wo=4096*576*2, bx=1152, w1=576*4608*2, w2=4608*576*2,
             out=1152, dbg=256, ws=268435456)
KOFF = dict(x=0, k=8, v=16, wq=24, wo=32, bx=40, w1=48, w2=56, out=64, dbg=72, ws=80)

class Asm:
    def __init__(self):
        self.lines = []
        self.nlabel = 0
    def __call__(self, s, *a):
        for ln in s.strip("\n").split("\n"):
            ln = ln.strip()
            if not ln: continue
            if ln.endswith(":"):
                self.lines.append(ln)
            else:
                self.lines.append("    " + ln)
    def label(self, p="L"):
        self.nlabel += 1
        return f"{p}_{self.nlabel}"
    def text(self):
        return "\n".join(self.lines) + "\n"

def kernel_text(label, body, vgpr, sgpr=102, accum=None):
    if accum is None:
        accum = min(256, (vgpr + 3) // 4 * 4)
    return f""".globl {label}
.p2align 8
.type {label},@function
{label}:
{body}
""", f""".p2align 6
.amdhsa_kernel {label}
  .amdhsa_next_free_vgpr {vgpr}
  .amdhsa_next_free_sgpr {sgpr}
  .amdhsa_accum_offset {accum}
  .amdhsa_group_segment_fixed_size 0
  .amdhsa_kernarg_size 88
  .amdhsa_user_sgpr_count 2
  .amdhsa_user_sgpr_kernarg_segment_ptr 1
  .amdhsa_system_sgpr_workgroup_id_x 1
  .amdhsa_float_denorm_mode_32 3
.end_amdhsa_kernel
"""

def single_file(body, grid, block, lds, vgpr, sgpr=102, accum=None):
    t, d = kernel_text(NAME + "_kernel", body, vgpr, sgpr, accum)
    return (HEADER + f"; @launch grid=({grid},1,1) block=({block},1,1) lds={lds}\n"
            + '.amdgcn_target "amdgcn-amd-amdhsa--gfx950"\n.text\n' + t + '.section .rodata,"a"\n' + d)

def multi_file(kernels):
    out = HEADER
    for (label, body, grid, block, lds, vgpr) in kernels:
        out += f"; @launch kernel={label} grid=({grid},1,1) block=({block},1,1) lds={lds}\n"
    out += '.amdgcn_target "amdgcn-amd-amdhsa--gfx950"\n.text\n'
    descs = ""
    seen = set()
    for (label, body, grid, block, lds, vgpr) in kernels:
        if label in seen: continue
        seen.add(label)
        t, d = kernel_text(label, body, vgpr)
        out += t
        descs += d
    out += '.section .rodata,"a"\n' + descs
    return out
```

```python
import re

TRANS = ("v_exp_f32", "v_log_f32", "v_rcp_f32", "v_rsq_f32", "v_sqrt_f32", "v_sin_f32", "v_cos_f32")

def regs(op):
    op = op.strip()
    if op.startswith("-") or op.startswith("|"):
        op = op.strip("-|")
    m = re.fullmatch(r"([vsa])\[(\d+):(\d+)\]", op)
    if m:
        return {(m.group(1), i) for i in range(int(m.group(2)), int(m.group(3)) + 1)}
    m = re.fullmatch(r"([vsa])(\d+)", op)
    if m:
        return {(m.group(1), int(m.group(2)))}
    if op == "vcc":
        return {("s", 106), ("s", 107)}
    if op == "vcc_lo": return {("s", 106)}
    if op == "vcc_hi": return {("s", 107)}
    if op == "exec":
        return {("s", 126), ("s", 127)}
    if op == "m0":
        return {("s", 124)}
    return set()

def split_ops(s):
    out = []; depth = 0; cur = ""
    for ch in s:
        if ch == "[": depth += 1
        if ch == "]": depth -= 1
        if ch == "," and depth == 0:
            out.append(cur.strip()); cur = ""
        else:
            cur += ch
    if cur.strip(): out.append(cur.strip())
    return out

class Ins:
    def __init__(self, line):
        self.line = line
        code = line.split(";")[0].strip()
        self.label = code.endswith(":")
        self.empty = (code == "" or code.startswith("."))
        self.kind = None; self.w = set(); self.r = set(); self.mn = ""
        self.dpp = False; self.srcc = set(); self.srcab = set(); self.stdata = set(); self.nslots = 0
        if self.label or self.empty: return
        parts = code.split(None, 1)
        mn = parts[0]; self.mn = mn
        rest = parts[1] if len(parts) > 1 else ""
        ops = split_ops(rest)
        mods = ""
        if ops:
            l = ops[-1].split(None, 1)
            if len(l) > 1 and not ops[-1].startswith("quad_perm"):
                ops[-1] = l[0]; mods = l[1]
        self.nslots = 1
        if mn == "s_nop":
            self.kind = "nop"; self.nslots = int(ops[0], 0) + 1; return
        if mn.startswith("v_mfma"):
            self.kind = "mfma"
            self.w = regs(ops[0]); self.srcab = regs(ops[1]) | regs(ops[2]); self.srcc = regs(ops[3])
            self.r = self.srcab | self.srcc
            return
        if mn.startswith("v_"):
            self.kind = "valu"
            self.dpp = ("row_" in rest) or ("quad_perm" in rest) or ("wave_" in rest)
            if "permlane" in mn:
                self.w = regs(ops[0]) | regs(ops[1]); self.r = set(self.w); return
            self.w = regs(ops[0])
            for o in ops[1:]: self.r |= regs(o)
            if mn.startswith("v_cmpx"): self.w |= regs("exec")
            if mn.startswith(("v_fmac", "v_mac", "v_dot2c", "v_writelane")) or self.dpp: self.r |= self.w
            if mn.startswith(("v_add_co", "v_sub_co", "v_addc", "v_subb")):
                self.w |= regs(ops[1])
            return
        if mn.startswith(("buffer_", "global_", "flat_")):
            self.kind = "vmem"
            if "load" in mn and " lds" not in (" " + mods):
                self.w = regs(ops[0])
                for o in ops[1:]: self.r |= regs(o)
                if "d16" in mn: self.r |= self.w
            else:
                for o in ops: self.r |= regs(o)
                if "store" in mn and ("x3" in mn or "x4" in mn):
                    self.stdata = regs(ops[0]) if mn.startswith("buffer_") else regs(ops[1])
            return
        if mn.startswith("ds_"):
            self.kind = "ds"
            if mn.startswith(("ds_read", "ds_bpermute", "ds_permute", "ds_swizzle")) or "_rtn" in mn:
                self.w = regs(ops[0])
                for o in ops[1:]: self.r |= regs(o)
            else:
                for o in ops: self.r |= regs(o)
            return
        self.kind = "salu"
        if ops and not mn.startswith(("s_cmp", "s_cbranch", "s_branch", "s_waitcnt", "s_barrier", "s_endpgm", "s_sleep", "s_bitcmp", "s_setprio")):
            self.w = regs(ops[0])
            for o in ops[1:]: self.r |= regs(o)

def need(p, c):
    n = 0
    V = lambda s: {x for x in s if x[0] in "va"}
    S = lambda s: {x for x in s if x[0] == "s"}
    if p.kind == "valu":
        pv = V(p.w); ps = S(p.w)
        if c.kind == "valu":
            if c.dpp and (pv & c.r): n = max(n, 2)
            if "permlane" in c.mn and (pv & c.r): n = max(n, 2)
            if c.mn.startswith(("v_readlane", "v_readfirstlane")) and (pv & c.r): n = max(n, 1)
            if p.mn.startswith(TRANS) and (pv & c.r): n = max(n, 1)
            cr = set(c.r)
            if c.mn.startswith("v_cndmask") and not S(c.r): cr |= regs("vcc")
            if ps & cr: n = max(n, 2)
            if c.mn.startswith(("v_readlane", "v_writelane")) and (ps & cr): n = max(n, 4)
            if (ps & regs("exec")):
                if c.dpp: n = max(n, 5)
                if "permlane" in c.mn or c.mn.startswith(("v_readlane", "v_readfirstlane", "v_writelane")): n = max(n, 4)
            if ("sdwa" in p.line or "op_sel" in p.line) and (pv & (c.r | c.w)): n = max(n, 1)
        if c.kind == "mfma":
            if pv & c.r: n = max(n, 2)
            if ps & regs("exec"): n = max(n, 4)
        if c.kind == "vmem" and (ps & c.r): n = max(n, 5)
    if p.kind == "mfma":
        if c.kind == "mfma":
            if p.w & c.srcab: n = max(n, 8)
            if p.w & c.srcc and p.w != c.srcc: n = max(n, 6)
            if (p.w & c.w) and not (p.w == c.srcc): n = max(n, 8)
        elif c.kind in ("valu", "vmem", "ds"):
            if p.w & (c.r | c.w): n = max(n, 8)
            if c.kind == "valu" and (p.srcc & c.w): n = max(n, 3)
    if p.kind == "vmem" and p.stdata:
        if c.kind in ("valu", "mfma") and (p.stdata & c.w): n = max(n, 2)
        if c.kind in ("vmem", "ds") and (p.stdata & c.w): n = max(n, 1)
    if p.kind == "salu" and (("s", 124) in p.w) and c.kind == "vmem" and " lds" in c.line: n = max(n, 1)
    return n

def pad(text):
    out = []; hist = []
    added = 0
    for line in text.split("\n"):
        ins = Ins(line)
        if ins.label or ins.empty:
            out.append(line); continue
        req = 0
        dist = 0
        for p in reversed(hist):
            if dist >= 8: break
            k = need(p, ins) - dist
            req = max(req, k)
            dist += p.nslots
        if req > 0:
            nop = Ins(f"    s_nop {req-1}")
            out.append(nop.line); hist.append(nop); added += 1
        out.append(line); hist.append(ins)
        if ins.mn in ("s_branch", "s_endpgm"):
            hist = []
        hist = hist[-12:]
    return "\n".join(out)
```

```python
import sys, struct
from asmlib import *
import hazard

def f2u(f): return struct.unpack("<I", struct.pack("<f", f))[0]

SBIT = 0x80000
QP   = 0x00000
MLP  = 0x04000
OP   = 0x08000
HC   = 0x30000
EP   = 0x100000
EPOCH = 0xFF000
STAMP = 0x8000000
L_Q  = 0
L_ML = 512
L_ST = 640
L_PL = 768
L_OL = 6144
LDS_BYTES = 6144 + 8192

sW, sX, sJ = "s3", "s4", "s5"
WS, KS, VS, W1S, W2S, XS, OUTS, WQS, WOS = 40, 44, 48, 52, 56, 60, 64, 68, 72
def srd(n): return f"s[{n}:{n+3}]"
sT = "s76"; sE = "s77"; sSEL01 = "s78"; sSEL23 = "s79"; sFFM = "s80"; sHI = "s81"; sF = "s82"; sCNT = "s83"
sNM = "s84"
vL = "v1"; vM = [2, 3, 4, 5]; vTB = [6, 7, 8, 9]
DPP = "row_mask:0xf bank_mask:0xf"

class G:
    def __init__(self, stamps=False, trigger=False, nt="nt", prewarm=True, n1=64):
        self.a = Asm(); self.stamps = stamps; self.trigger = trigger; self.nt = nt; self.prewarm = prewarm; self.n1 = n1
        self.used = []
    def stamp(self, k):
        if not self.stamps: return
        i = len(self.used); assert i < 8
        self.used.append(k)
        self.a(f"s_memrealtime s[{86+2*i}:{87+2*i}]")
    def flush(self):
        a = self.a
        if self.stamps and self.used:
            a(f"""
            s_waitcnt lgkmcnt(0)
            s_lshl_b32 s6, s2, 8
            s_add_u32 s6, s6, {STAMP}
            s_mov_b64 exec, 1
            v_mov_b32 v10, 0
            """)
            for i, k in enumerate(self.used):
                a(f"v_mov_b32 v{12+2*i}, s{86+2*i}\nv_mov_b32 v{13+2*i}, s{87+2*i}")
                a(f"buffer_store_dwordx2 v[{12+2*i}:{13+2*i}], v10, {srd(WS)}, s6 offen offset:{8*k}")
    def end(self):
        self.flush(); self.a("s_endpgm")

    def tagsetup(self):
        self.a(f"""
        s_waitcnt lgkmcnt(0)
        s_and_b32 s6, {sE}, 0x7f7f7f7f
        s_add_u32 s6, s6, 0x01010101
        s_and_b32 s7, {sE}, 0x80808080
        s_xor_b32 {sT}, s6, s7
        v_mov_b32 v{vTB[0]}, {sT}
        v_lshrrev_b32 v{vTB[1]}, 8, v{vTB[0]}
        v_lshrrev_b32 v{vTB[2]}, 16, v{vTB[0]}
        v_lshrrev_b32 v{vTB[3]}, 24, v{vTB[0]}
        """)
    def masks(self, t0=10, t1=11):
        self.a(f"""
        v_and_b32 v{t0}, 1, {vL}
        v_lshlrev_b32 v{t0}, 4, v{t0}
        v_mov_b32 v{t1}, 0xffff
        v_lshlrev_b32 v{t0}, v{t0}, v{t1}
        v_bfe_u32 v{t1}, {vL}, 1, 2
        """)
        for d in range(4):
            self.a(f"v_cmp_eq_u32 vcc, {d}, v{t1}\nv_cndmask_b32 v{vM[d]}, 0, v{t0}, vcc")
    def tag(self, r):
        for i in range(4):
            self.a(f"v_bfi_b32 v{r+i}, {sFFM}, v{vTB[i]}, v{r+i}")
    def poll(self, loads, grans, soff, dual, tmp, sleep=0):
        a = self.a
        lp = a.label("L_poll"); ld = a.label("L_pdone")
        a(f"s_mov_b32 {sCNT}, 0")
        a(f"{lp}:")
        for l in loads: a(l)
        a("s_waitcnt vmcnt(0)")
        t0, t1, acc = tmp, tmp + 1, tmp + 2
        for k, g in enumerate(grans):
            a(f"v_perm_b32 v{t0}, v{g+1}, v{g}, {sSEL01}")
            a(f"v_perm_b32 v{t1}, v{g+3}, v{g+2}, {sSEL23}")
            if k == 0:
                a(f"v_bitop3_b32 v{acc}, v{t0}, v{t1}, v{vTB[0]} bitop3:0x96")
            else:
                a(f"v_bitop3_b32 v{t0}, v{t0}, v{t1}, v{vTB[0]} bitop3:0x96")
                a(f"v_or_b32 v{acc}, v{acc}, v{t0}")
        a(f"v_cmp_ne_u32 vcc, 0, v{acc}")
        a(f"s_add_u32 {sCNT}, {sCNT}, 1")
        a(f"s_cbranch_vccz {ld}")
        if sleep: a(f"s_sleep {sleep}")
        if dual:
            a(f"s_cmp_ge_u32 {sCNT}, {self.n1}\ns_cselect_b32 s7, {SBIT}, 0\ns_xor_b32 {soff}, {soff}, s7")
        a(f"s_cmp_lt_u32 {sCNT}, 0x20000\ns_cbranch_scc1 {lp}\ns_endpgm")
        a(f"{ld}:")
    def red3(self, rs, op="add"):
        for m in ("quad_perm:[1,0,3,2]", "quad_perm:[2,3,0,1]", "row_half_mirror"):
            for r in rs:
                self.a(f"v_{op}_f32_dpp v{r}, v{r}, v{r} {m} {DPP}")
    def rnd_pairs(self, rs, tmp):
        for k in range(0, len(rs), 2):
            self.a(f"v_cvt_pk_bf16_f32 v{tmp+k//2}, v{rs[k]}, v{rs[k+1]}")
        for k in range(0, len(rs), 2):
            self.a(f"v_lshlrev_b32 v{rs[k]}, 16, v{tmp+k//2}\nv_and_b32 v{rs[k+1]}, {sHI}, v{tmp+k//2}")
    def rnd1(self, r):
        self.a(f"v_cvt_pk_bf16_f32 v{r}, v{r}, v{r}\nv_and_b32 v{r}, {sHI}, v{r}")
    def bbuild(self, src, dst):
        self.a(f"v_cvt_pk_bf16_f32 v{src}, v{src}, v{src}")
        for d in range(4):
            self.a(f"v_and_b32 v{dst+d}, v{vM[d]}, v{src}")

    def xloads(self, dst, vtmp):
        a = self.a
        a(f"v_lshrrev_b32 v{vtmp}, 3, {vL}\nv_lshlrev_b32 v{vtmp}, 1, v{vtmp}\ns_lshl_b32 s8, {sW}, 7")
        for v in range(8): a(f"v_mov_b32 v{dst+v}, 0")
        for v in range(8):
            a(f"buffer_load_short_d16_hi v{dst+v}, v{vtmp}, {srd(XS)}, s8 offen offset:{16*v}")
    def w32_voff(self, dst, t, stride):
        a = self.a
        a(f"""
        v_lshrrev_b32 v{dst}, 4, {vL}
        v_lshlrev_b32 v{dst}, 1, v{dst}
        v_bfe_u32 v{t}, {vL}, 2, 1
        v_add_u32 v{dst}, v{dst}, v{t}
        v_and_b32 v{t}, 8, {vL}
        v_add_u32 v{dst}, v{dst}, v{t}
        v_mul_u32_u24 v{dst}, {stride}, v{dst}
        v_and_b32 v{t}, 3, {vL}
        v_lshl_add_u32 v{dst}, v{t}, 4, v{dst}
        """)
    def w32_loads(self, dst, voff, S, stride, sbase):
        a = self.a
        a(f"s_mul_i32 s9, {sW}, {64*stride}\ns_add_u32 s9, s9, {sbase}")
        for t in range(4):
            a(f"buffer_load_dwordx4 v[{dst+4*t}:{dst+4*t+3}], v{voff}, {srd(S)}, s9 offen {self.nt}")
            if t < 3: a(f"s_add_u32 s9, s9, {16*stride}")
    def ln_gemv(self, A, W, B, T, wait=None):
        a = self.a
        s1, s2 = T, T + 1
        a(f"v_add_f32 v{s1}, v{A}, v{A+1}\nv_mul_f32 v{s2}, v{A}, v{A}")
        a(f"v_add_f32 v{T+2}, v{A+2}, v{A+3}\nv_mul_f32 v{T+3}, v{A+1}, v{A+1}")
        a(f"v_add_f32 v{T+4}, v{A+4}, v{A+5}\nv_fmac_f32 v{s2}, v{A+2}, v{A+2}")
        a(f"v_add_f32 v{T+5}, v{A+6}, v{A+7}\nv_fmac_f32 v{T+3}, v{A+3}, v{A+3}")
        a(f"v_add_f32 v{s1}, v{s1}, v{T+2}\nv_fmac_f32 v{s2}, v{A+4}, v{A+4}")
        a(f"v_add_f32 v{T+4}, v{T+4}, v{T+5}\nv_fmac_f32 v{T+3}, v{A+5}, v{A+5}")
        a(f"v_fmac_f32 v{s2}, v{A+6}, v{A+6}\nv_fmac_f32 v{T+3}, v{A+7}, v{A+7}")
        a(f"v_add_f32 v{s1}, v{s1}, v{T+4}\nv_add_f32 v{s2}, v{s2}, v{T+3}")
        a(f"v_bfe_u32 v{T+2}, {vL}, 4, 1\nv_lshlrev_b32 v{T+2}, 2, v{T+2}\ns_lshl_b32 s8, {sW}, 3\nv_add_u32 v{T+2}, s8, v{T+2}")
        a(f"v_permlane16_swap_b32 v{s1}, v{s2}")
        a(f"v_add_f32 v{s1}, v{s1}, v{s2}")
        a(f"v_add_f32_dpp v{s1}, v{s1}, v{s1} row_ror:8 {DPP}")
        a(f"v_mov_b32 v{s2}, v{s1}")
        a(f"v_permlane32_swap_b32 v{s1}, v{s2}")
        a(f"v_add_f32 v{s1}, v{s1}, v{s2}")
        a(f"s_mov_b64 exec, 0x10001\nds_write_b32 v{T+2}, v{s1} offset:{L_ST}\ns_mov_b64 exec, -1")
        a(f"v_and_b32 v{T+2}, 15, {vL}\nv_cmp_gt_u32 vcc, 9, v{T+2}\nv_lshlrev_b32 v{T+2}, 3, v{T+2}")
        a("s_waitcnt lgkmcnt(0)\ns_barrier")
        a(f"ds_read_b64 v[{T+4}:{T+5}], v{T+2} offset:{L_ST}")
        a("s_waitcnt lgkmcnt(0)")
        a(f"v_cndmask_b32 v{s1}, 0, v{T+4}, vcc\nv_cndmask_b32 v{s2}, 0, v{T+5}, vcc")
        for m in ("quad_perm:[1,0,3,2]", "quad_perm:[2,3,0,1]", "row_half_mirror", "row_mirror"):
            a(f"v_add_f32_dpp v{s1}, v{s1}, v{s1} {m} {DPP}\nv_add_f32_dpp v{s2}, v{s2}, v{s2} {m} {DPP}")
        inv = hex(f2u(1.0 / 576))
        a(f"v_mul_f32 v{s1}, {inv}, v{s1}\nv_mul_f32 v{s2}, {inv}, v{s2}")
        a(f"v_fma_f32 v{s2}, -v{s1}, v{s1}, v{s2}\nv_max_f32 v{s2}, 0, v{s2}")
        a(f"v_cvt_pk_bf16_f32 v{T+2}, v{s1}, v{s2}")
        a(f"v_lshlrev_b32 v{s1}, 16, v{T+2}\nv_and_b32 v{s2}, {sHI}, v{T+2}")
        a(f"v_add_f32 v{s2}, {hex(f2u(1e-5))}, v{s2}")
        for v in range(8): a(f"v_sub_f32 v{A+v}, v{A+v}, v{s1}")
        self.rnd1(s2)
        a(f"v_sqrt_f32 v{s2}, v{s2}")
        self.rnd_pairs([A + v for v in range(8)], T + 2)
        self.rnd1(s2)
        a(f"v_rcp_f32 v{s2}, v{s2}")
        for v in range(8): a(f"v_mul_f32 v{A+v}, v{A+v}, v{s2}")
        for v in range(8): self.bbuild(A + v, B + 4 * v)
        if wait: a(wait)
        D1, D2 = T + 4, T + 8
        assert D1 % 2 == 0
        for t in range(4):
            for b, D in ((0, D1), (1, D2)):
                c = "0" if t == 0 else f"v[{D}:{D+3}]"
                v = 2 * t + b
                a(f"v_mfma_f32_16x16x32_bf16 v[{D}:{D+3}], v[{W+4*t}:{W+4*t+3}], v[{B+4*v}:{B+4*v+3}], {c}")
        a(f"""
        v_and_b32 v{T}, 7, {vL}
        v_mul_u32_u24 v{T}, 41, v{T}
        v_lshrrev_b32 v{T+1}, 4, {vL}
        s_lshl_b32 s8, {sW}, 2
        v_add3_u32 v{T}, v{T}, v{T+1}, s8
        v_lshlrev_b32 v{T}, 4, v{T}
        s_mov_b32 exec_lo, 0xff0000ff
        s_mov_b32 exec_hi, 0
        ds_write_b128 v{T}, v[{D1}:{D1+3}] offset:{L_PL}
        s_mov_b32 exec_lo, 0
        s_mov_b32 exec_hi, 0xff0000ff
        ds_write_b128 v{T}, v[{D2}:{D2+3}] offset:{L_PL}
        s_mov_b64 exec, -1
        s_waitcnt lgkmcnt(0)
        s_barrier
        """)
    def pl_addr(self, va, R):
        self.a(f"""
        v_lshrrev_b32 v{va}, 3, {vL}
        v_mul_u32_u24 v{va}, 41, v{va}
        v_and_b32 v{R}, 7, {vL}
        v_add_lshl_u32 v{va}, v{va}, v{R}, 4
        """)
        for i in range(4): self.a(f"v_mov_b32 v{R+16+i}, 0")
    def pl_reduce(self, va, R):
        a = self.a
        for k in range(4):
            a(f"ds_read_b128 v[{R+4*k}:{R+4*k+3}], v{va} offset:{L_PL + 128*k}")
        a(f"s_mov_b32 exec_lo, 0x0f0f0f0f\ns_mov_b32 exec_hi, 0x0f0f0f0f")
        a(f"ds_read_b128 v[{R+16}:{R+19}], v{va} offset:{L_PL + 512}\ns_mov_b64 exec, -1")
        a("s_waitcnt lgkmcnt(3)")
        a(f"v_pk_add_f32 v[{R}:{R+1}], v[{R}:{R+1}], v[{R+4}:{R+5}]\nv_pk_add_f32 v[{R+2}:{R+3}], v[{R+2}:{R+3}], v[{R+6}:{R+7}]")
        a("s_waitcnt lgkmcnt(1)")
        a(f"v_pk_add_f32 v[{R+8}:{R+9}], v[{R+8}:{R+9}], v[{R+12}:{R+13}]\nv_pk_add_f32 v[{R+10}:{R+11}], v[{R+10}:{R+11}], v[{R+14}:{R+15}]")
        a("s_waitcnt lgkmcnt(0)")
        a(f"v_pk_add_f32 v[{R}:{R+1}], v[{R}:{R+1}], v[{R+16}:{R+17}]\nv_pk_add_f32 v[{R+2}:{R+3}], v[{R+2}:{R+3}], v[{R+18}:{R+19}]")
        a(f"v_pk_add_f32 v[{R}:{R+1}], v[{R}:{R+1}], v[{R+8}:{R+9}]\nv_pk_add_f32 v[{R+2}:{R+3}], v[{R+2}:{R+3}], v[{R+10}:{R+11}]")
        self.red3([R + i for i in range(4)])

    def build(self):
        a = self.a; nt = self.nt
        LOG2E = hex(f2u(1.4426950408889634))
        a(f"""
        s_cmp_ge_u32 s2, 256
        s_cbranch_scc1 L_end
        s_load_dwordx2 s[{WS}:{WS+1}], s[0:1], 80
        s_load_dwordx2 s[{KS}:{KS+1}], s[0:1], 8
        s_load_dwordx2 s[{VS}:{VS+1}], s[0:1], 16
        s_load_dwordx2 s[{WQS}:{WQS+1}], s[0:1], 24
        s_load_dwordx2 s[{XS}:{XS+1}], s[0:1], 0
        s_load_dwordx2 s[{WOS}:{WOS+1}], s[0:1], 32
        s_load_dwordx2 s[{W1S}:{W1S+1}], s[0:1], 48
        s_load_dwordx2 s[{W2S}:{W2S+1}], s[0:1], 56
        s_load_dwordx2 s[{OUTS}:{OUTS+1}], s[0:1], 64
        v_lshrrev_b32 v10, 6, v0
        v_and_b32 {vL}, 63, v0
        s_and_b32 {sX}, s2, 7
        s_lshr_b32 {sJ}, s2, 3
        v_readfirstlane_b32 {sW}, v10
        """)
        self.stamp(0)
        for S, n in ((WS, "ws"), (KS, "k"), (VS, "v"), (W1S, "w1"), (W2S, "w2"), (XS, "x"), (OUTS, "out"), (WQS, "wq"), (WOS, "wo")):
            a(f"s_mov_b32 s{S+2}, {SIZES[n]}\ns_mov_b32 s{S+3}, 0x20000")
        a(f"""
        s_mov_b32 {sSEL01}, 0x0c0c0400
        s_mov_b32 {sSEL23}, 0x04000c0c
        s_mov_b32 {sFFM}, 0xff
        s_mov_b32 {sHI}, 0xffff0000
        s_mov_b32 {sNM}, 0xffffff00
        s_cmp_ge_u32 {sJ}, 16
        s_cbranch_scc1 L_Q
        s_mul_i32 {sF}, {sX}, 18
        s_add_u32 {sF}, {sF}, {sJ}
        s_cmp_eq_u32 {sW}, 8
        s_cbranch_scc1 L_AC
        s_cbranch_scc0 L_A1
        L_A1:
        s_cmp_gt_u32 {sW}, 8
        s_cbranch_scc1 L_AG
        """)
        base_used = list(self.used)
        K, V, W1, XA, QF, S0 = 32, 64, 96, 112, 16, 12
        S0 = 120
        a(f"""
        s_lshr_b32 s6, {sJ}, 3
        s_lshl_b32 s7, {sX}, 1
        s_add_u32 s6, s6, s7
        s_lshl_b32 s6, s6, 21
        s_and_b32 s7, {sJ}, 7
        s_lshl_b32 s7, s7, 16
        s_add_u32 s6, s6, s7
        s_lshl_b32 s7, {sW}, 13
        s_add_u32 s6, s6, s7
        s_add_u32 s6, s6, {6144*256}
        s_add_u32 s7, s6, 4096
        v_and_b32 v10, 15, {vL}
        v_lshrrev_b32 v11, 4, {vL}
        v_lshlrev_b32 v12, 8, v10
        v_lshl_add_u32 v12, v11, 4, v12
        v_lshlrev_b32 v13, 10, v11
        v_lshl_add_u32 v13, v10, 4, v13
        s_waitcnt lgkmcnt(0)
        """)
        for tau in range(2):
            for i in range(4):
                r = K + 16 * tau + 4 * i
                a(f"buffer_load_dwordx4 v[{r}:{r+3}], v12, {srd(KS)}, s{6+tau} offen offset:{64*i} {nt}")
        for tau in range(2):
            for i in range(4):
                r = V + 16 * tau + 4 * i
                a(f"buffer_load_dwordx4 v[{r}:{r+3}], v13, {srd(VS)}, s{6+tau} offen offset:{256*i} {nt}")
        a(f"s_load_dword {sE}, s[{WS}:{WS+1}], {EPOCH}")
        self.stamp(1)
        self.masks()
        a(f"""
        v_bfe_u32 v10, {vL}, 3, 1
        v_lshlrev_b32 v14, 6, v10
        v_lshlrev_b32 v10, 8, v10
        v_lshrrev_b32 v11, 4, {vL}
        v_lshl_add_u32 v10, v11, 4, v10
        s_lshl_b32 s8, {sW}, 3
        v_add_u32 v14, s8, v14
        """)
        self.w32_voff(15, 11, 9216)
        self.tagsetup()
        a("s_barrier")
        for i in range(4):
            a(f"ds_read_b128 v[{QF+4*i}:{QF+4*i+3}], v10 offset:{L_Q + 64*i}")
        a("s_waitcnt vmcnt(8) lgkmcnt(0)")
        self.stamp(2)
        for i in range(4):
            for tau in range(2):
                D = S0 + 4 * tau
                c = "0" if i == 0 else f"v[{D}:{D+3}]"
                r = K + 16 * tau + 4 * i
                a(f"v_mfma_f32_16x16x32_bf16 v[{D}:{D+3}], v[{r}:{r+3}], v[{QF+4*i}:{QF+4*i+3}], {c}")
        S = [S0 + k for k in range(8)]
        self.rnd_pairs(S, QF)
        for r in S: a(f"v_mul_f32 v{r}, {hex(f2u(128 ** -0.5))}, v{r}")
        self.rnd_pairs(S, QF)
        m, t, lsum = QF, QF + 2, QF + 1
        a(f"v_max3_f32 v{m}, v{S[0]}, v{S[1]}, v{S[2]}\nv_max3_f32 v{t}, v{S[3]}, v{S[4]}, v{S[5]}")
        a(f"v_max3_f32 v{m}, v{m}, v{S[6]}, v{S[7]}\nv_max_f32 v{m}, v{m}, v{t}")
        a(f"v_mov_b32 v{t}, v{m}\nv_permlane16_swap_b32 v{m}, v{t}\nv_max_f32 v{m}, v{m}, v{t}")
        a(f"v_mov_b32 v{t}, v{m}\nv_permlane32_swap_b32 v{m}, v{t}\nv_max_f32 v{m}, v{m}, v{t}")
        for r in S: a(f"v_sub_f32 v{r}, v{r}, v{m}")
        for r in S: a(f"v_mul_f32 v{r}, {LOG2E}, v{r}")
        for r in S: a(f"v_exp_f32 v{r}, v{r}")
        a(f"v_add_f32 v{lsum}, v{S[0]}, v{S[1]}\nv_add_f32 v{t}, v{S[2]}, v{S[3]}\nv_add_f32 v{t+1}, v{S[4]}, v{S[5]}\nv_add_f32 v{t+2}, v{S[6]}, v{S[7]}")
        a(f"v_add_f32 v{lsum}, v{lsum}, v{t}\nv_add_f32 v{t+1}, v{t+1}, v{t+2}\nv_add_f32 v{lsum}, v{lsum}, v{t+1}")
        a(f"v_mov_b32 v{t}, v{lsum}\nv_permlane16_swap_b32 v{lsum}, v{t}\nv_add_f32 v{lsum}, v{lsum}, v{t}")
        a(f"v_mov_b32 v{t}, v{lsum}\nv_permlane32_swap_b32 v{lsum}, v{t}\nv_add_f32 v{lsum}, v{lsum}, v{t}")
        a(f"s_mov_b64 exec, 0x101\nds_write_b64 v14, v[{m}:{m+1}] offset:{L_ML}\ns_mov_b64 exec, -1")
        a("s_waitcnt lgkmcnt(0)\ns_barrier")
        for k in range(8): self.bbuild(S[k], K + 4 * k)
        a(f"s_lshl_b32 s10, {sF}, 6")
        self.w32_loads(W1, 15, W1S, 9216, "s10")
        self.xloads(XA, 11)
        self.stamp(3)
        D = [S0, S0 + 4]
        for i in range(4):
            for tau in range(2):
                k = 4 * tau + i
                c = "0" if i == 0 else f"v[{D[tau]}:{D[tau]+3}]"
        order = [(0, 0), (0, 1), (0, 2), (0, 3), (1, 0), (1, 1), (1, 2), (1, 3)]
        for n, (tau, i) in enumerate(order):
            k = 4 * tau + i
            c = "0" if n == 0 else f"v[{S0}:{S0+3}]"
            a(f"s_waitcnt vmcnt({12 + 7 - n})")
            a(f"v_mfma_f32_16x16x32_bf16 v[{S0}:{S0+3}], v[{V+4*k}:{V+4*k+3}], v[{K+4*k}:{K+4*k+3}], {c}")
        a(f"v_lshlrev_b32 v10, 4, {vL}\ns_lshl_b32 s8, {sW}, 10\nv_add_u32 v10, s8, v10")
        a(f"ds_write_b128 v10, v[{S0}:{S0+3}] offset:{L_OL}")
        a("s_waitcnt lgkmcnt(0)\ns_barrier")
        self.stamp(4)
        a("s_branch L_F")
        usedA = list(self.used)

        self.used = list(base_used)
        a("L_AC:")
        self.w32_voff(15, 11, 9216)
        a(f"s_lshl_b32 s10, {sF}, 6\ns_waitcnt lgkmcnt(0)")
        a(f"s_load_dword {sE}, s[{WS}:{WS+1}], {EPOCH}")
        self.w32_loads(W1, 15, W1S, 9216, "s10")
        self.xloads(XA, 11)
        self.masks()
        a(f"""
        v_bfe_u32 v10, {vL}, 3, 1
        v_lshlrev_b32 v13, 5, v10
        v_lshrrev_b32 v11, 4, {vL}
        v_lshl_add_u32 v13, v11, 3, v13
        v_and_b32 v11, 7, {vL}
        v_add_lshl_u32 v13, v13, v11, 4
        s_lshl_b32 s12, {sX}, 4
        s_add_u32 s12, s12, {sJ}
        s_lshl_b32 s12, s12, 10
        s_add_u32 s12, s12, {OP}
        s_xor_b32 s13, s12, {SBIT}
        v_lshlrev_b32 v14, 6, v10
        v_lshlrev_b32 v12, 4, {vL}
        s_lshl_b32 s11, {sX}, 11
        s_lshr_b32 s6, {sJ}, 3
        s_lshl_b32 s7, s6, 10
        s_add_u32 s11, s11, s7
        s_add_u32 s11, s11, {QP}
        s_lshl_b32 s14, {sX}, 9
        s_lshl_b32 s7, s6, 8
        s_add_u32 s14, s14, s7
        s_and_b32 s7, {sJ}, 7
        s_lshl_b32 s7, s7, 4
        s_add_u32 s14, s14, s7
        s_add_u32 s14, s14, {MLP}
        s_xor_b32 s15, s14, {SBIT}
        v_lshlrev_b32 v16, 7, v10
        v_lshrrev_b32 v17, 3, {vL}
        v_lshlrev_b32 v17, 6, v17
        v_lshl_add_u32 v17, v11, 1, v17
        """)
        self.tagsetup()
        if self.prewarm:
            a(f"v_xor_b32 v20, 0x80, v{vTB[0]}\nv_mov_b32 v21, v20\nv_mov_b32 v22, v20\nv_mov_b32 v23, v20")
            a(f"buffer_store_dwordx4 v[20:23], v13, {srd(WS)}, s12 offen")
            a(f"s_mov_b64 exec, 0x101\nbuffer_store_dwordx4 v[20:23], v16, {srd(WS)}, s14 offen\ns_mov_b64 exec, -1")
        self.poll([f"buffer_load_dwordx4 v[24:27], v12, {srd(WS)}, s11 offen sc1"], [24], "s11", True, 28)
        self.stamp(5)
        for i in range(4):
            a(f"ds_write_b16_d16_hi v17, v{24+i} offset:{L_Q + 16*i}")
        a("s_waitcnt lgkmcnt(0)\ns_barrier")
        a("s_barrier")
        ML = 32
        for k in range(4):
            a(f"ds_read_b128 v[{ML+4*k}:{ML+4*k+3}], v14 offset:{L_ML + 16*k}")
        a("s_waitcnt lgkmcnt(0)")
        ms = [ML + 2 * w for w in range(8)]; ls = [ML + 2 * w + 1 for w in range(8)]
        a(f"v_max3_f32 v20, v{ms[0]}, v{ms[1]}, v{ms[2]}\nv_max3_f32 v21, v{ms[3]}, v{ms[4]}, v{ms[5]}")
        a(f"v_max3_f32 v20, v20, v{ms[6]}, v{ms[7]}\nv_max_f32 v20, v20, v21")
        for r in ms: a(f"v_sub_f32 v{r}, v{r}, v20")
        for r in ms: a(f"v_mul_f32 v{r}, {LOG2E}, v{r}")
        for r in ms: a(f"v_exp_f32 v{r}, v{r}")
        a(f"v_mul_f32 v21, v{ms[0]}, v{ls[0]}")
        for w in range(1, 8): a(f"v_fmac_f32 v21, v{ms[w]}, v{ls[w]}")
        a("v_mov_b32 v22, 0\nv_mov_b32 v23, 0")
        self.tag(20)
        a(f"s_mov_b64 exec, 0x101\nbuffer_store_dwordx4 v[20:23], v16, {srd(WS)}, s14 offen")
        a(f"buffer_store_dwordx4 v[20:23], v16, {srd(WS)}, s15 offen sc1\ns_mov_b64 exec, -1")
        self.stamp(6)
        a("s_barrier")
        OL = 48
        for w in range(8):
            a(f"ds_read_b128 v[{OL+4*w}:{OL+4*w+3}], v12 offset:{L_OL + 1024*w}")
        for w in range(8):
            a(f"s_waitcnt lgkmcnt({7-w})")
            for i in range(4):
                if w == 0: a(f"v_mul_f32 v{24+i}, v{ms[0]}, v{OL+i}")
                else: a(f"v_fmac_f32 v{24+i}, v{ms[w]}, v{OL+4*w+i}")
        self.tag(24)
        a(f"buffer_store_dwordx4 v[24:27], v13, {srd(WS)}, s12 offen")
        a(f"buffer_store_dwordx4 v[24:27], v13, {srd(WS)}, s13 offen sc1")
        self.stamp(7)
        usedC = list(self.used)
        a("L_F:")
        HV = 16
        a(f"""
        v_and_b32 v10, 7, {vL}
        v_mul_u32_u24 v10, 2304, v10
        v_lshrrev_b32 v11, 3, {vL}
        v_lshl_add_u32 v10, v11, 4, v10
        s_lshl_b32 s11, {sW}, 8
        s_add_u32 s11, s11, {HC}
        """)
        self.poll([f"buffer_load_dwordx4 v[{HV}:{HV+3}], v10, {srd(WS)}, s11 offen sc1",
                   f"buffer_load_dwordx4 v[{HV+4}:{HV+7}], v10, {srd(WS)}, s11 offen offset:128 sc1"], [HV, HV + 4], "s11", False, 24)
        if self.stamps: a("s_memrealtime s[98:99]")
        H = [HV + k for k in range(8)]
        for r in H: a(f"v_and_b32 v{r}, {sNM}, v{r}")
        self.red3(H)
        self.rnd_pairs(H, 24)
        for k in range(8): a(f"v_add_f32 v{H[k]}, v{H[k]}, v{XA+k}")
        self.rnd_pairs(H, 24)
        self.ln_gemv(HV, W1, 32, 64)
        if self.stamps:
            a("s_memrealtime s[100:101]")
            a(f"s_cmp_eq_u32 {sW}, 8\ns_cbranch_scc1 L_FendC\ns_cmp_lg_u32 {sW}, 0\ns_cbranch_scc1 L_end\ns_cmp_ge_u32 {sJ}, 16\ns_cbranch_scc1 L_end")
            self.used = usedA + [30] + [8, 9]; self.end()
            a("L_FendC:")
            a(f"s_cmp_ge_u32 {sJ}, 16\ns_cbranch_scc1 L_end")
            self.used = [31] + usedC[1:] + [30, 30] + [10, 11]; self.end()
        else:
            a("s_endpgm")

        self.used = list(base_used)
        a("L_AG:")
        a(f"s_waitcnt lgkmcnt(0)\ns_load_dword {sE}, s[{WS}:{WS+1}], {EPOCH}")
        self.masks()
        self.tagsetup()
        a("s_barrier\ns_barrier\ns_barrier")
        a("L_G:")
        W2 = 32
        a(f"""
        v_lshrrev_b32 v10, 3, {vL}
        v_mul_u32_u24 v10, 1152, v10
        v_and_b32 v11, 7, {vL}
        v_lshl_add_u32 v10, v11, 4, v10
        s_sub_u32 s12, {sW}, 9
        s_mul_i32 s9, {sF}, {32*1152}
        s_mul_i32 s8, s12, 384
        s_add_u32 s9, s9, s8
        """)
        for rho in range(4):
            for c in range(3):
                r = W2 + 16 * c + 4 * rho
                a(f"buffer_load_dwordx4 v[{r}:{r+3}], v10, {srd(W2S)}, s9 offen offset:{128*c} {nt}")
            if rho < 3: a("s_add_u32 s9, s9, 9216")
        R = 80
        self.pl_addr(12, R)
        a(f"""
        v_lshrrev_b32 v13, 4, {vL}
        v_lshl_add_u32 v13, v13, 3, v11
        v_lshlrev_b32 v13, 4, v13
        s_mul_i32 s13, {sF}, 2304
        s_mul_i32 s8, s12, 768
        s_add_u32 s13, s13, s8
        s_add_u32 s13, s13, {EP}
        s_barrier
        s_barrier
        """)
        self.pl_reduce(12, R)
        Hs = [R + i for i in range(4)]
        self.rnd_pairs(Hs, R + 4)
        for i in range(4): a(f"v_mul_f32 v{R+4+i}, {hex(f2u(-1.4426950408889634))}, v{R+i}")
        for i in range(4): a(f"v_exp_f32 v{R+4+i}, v{R+4+i}")
        for i in range(4): a(f"v_add_f32 v{R+4+i}, 1.0, v{R+4+i}")
        for i in range(4): a(f"v_rcp_f32 v{R+4+i}, v{R+4+i}")
        for i in range(4): a(f"v_mul_f32 v{R+i}, v{R+i}, v{R+4+i}")
        Bq = 100
        for i in range(4): self.bbuild(R + i, Bq + 4 * i)
        self.stamp(12)
        Dg = [R + 4, R + 8, R + 12]
        n = 0
        for rho in range(4):
            for c in range(3):
                cc = "0" if rho == 0 else f"v[{Dg[c]}:{Dg[c]+3}]"
                r = W2 + 16 * c + 4 * rho
                a(f"s_waitcnt vmcnt({11-n})"); n += 1
                a(f"v_mfma_f32_16x16x32_bf16 v[{Dg[c]}:{Dg[c]+3}], v[{r}:{r+3}], v[{Bq+4*rho}:{Bq+4*rho+3}], {cc}")
        self.stamp(13)
        for i in range(4): a(f"v_permlane32_swap_b32 v{Dg[0]+i}, v{Dg[1]+i}")
        for i in range(4): a(f"v_permlane32_swap_b32 v{Dg[2]+i}, v{R+16+i}")
        for i in range(4): a(f"v_add_f32_dpp v{Dg[0]+i}, v{Dg[1]+i}, v{Dg[0]+i} row_ror:8 {DPP}")
        for i in range(4): a(f"v_add_f32_dpp v{Dg[2]+i}, v{R+16+i}, v{Dg[2]+i} row_ror:8 {DPP}")
        self.tag(Dg[0]); self.tag(Dg[2])
        a(f"""
        s_mov_b32 exec_lo, 0x00ff00ff
        s_mov_b32 exec_hi, 0x00ff00ff
        buffer_store_dwordx4 v[{Dg[0]}:{Dg[0]+3}], v13, {srd(WS)}, s13 offen sc1
        s_mov_b32 exec_hi, 0
        buffer_store_dwordx4 v[{Dg[2]}:{Dg[2]+3}], v13, {srd(WS)}, s13 offen offset:512 sc1
        """)
        if self.stamps:
            a(f"s_cmp_lg_u32 {sW}, 9\ns_cbranch_scc1 L_end\ns_cmp_ge_u32 {sJ}, 16\ns_cbranch_scc1 L_end")
            self.used = [31] + self.used[1:]
        self.end()

        self.used = list(base_used)
        a("L_Q:")
        a(f"""
        s_sub_u32 {sJ}, {sJ}, 16
        s_mul_i32 {sF}, {sX}, 18
        s_add_u32 {sF}, {sF}, {sJ}
        s_add_u32 {sF}, {sF}, 7
        s_cmp_gt_u32 {sW}, 8
        s_cbranch_scc1 L_QG
        """)
        WQ = 96
        self.w32_voff(15, 11, 8192)
        a(f"s_lshl_b32 s10, {sX}, 10\ns_lshl_b32 s7, {sJ}, 6\ns_add_u32 s10, s10, s7\ns_waitcnt lgkmcnt(0)")
        self.xloads(XA, 11)
        self.w32_loads(WQ, 15, WQS, 8192, "s10")
        a(f"s_load_dword {sE}, s[{WS}:{WS+1}], {EPOCH}")
        self.masks()
        self.pl_addr(12, 128)
        a(f"""
        v_lshrrev_b32 v13, 3, {vL}
        v_lshlrev_b32 v13, 4, v13
        s_lshl_b32 s12, {sX}, 11
        s_lshl_b32 s7, {sJ}, 7
        s_add_u32 s12, s12, s7
        s_add_u32 s12, s12, {QP}
        s_xor_b32 s13, s12, {SBIT}
        """)
        self.tagsetup()
        a("s_waitcnt vmcnt(4)")
        for k in range(8): a(f"v_mov_b32 v{16+k}, v{XA+k}")
        self.ln_gemv(16, WQ, 32, 64, wait="s_waitcnt vmcnt(0)")
        self.stamp(14)
        a(f"s_cmp_lg_u32 {sW}, 8\ns_cbranch_scc1 L_Q2")
        self.pl_reduce(12, 128)
        self.rnd_pairs([128, 129, 130, 131], 132)
        self.tag(128)
        a(f"""
        s_mov_b32 exec_lo, 0x01010101
        s_mov_b32 exec_hi, 0x01010101
        buffer_store_dwordx4 v[128:131], v13, {srd(WS)}, s12 offen
        buffer_store_dwordx4 v[128:131], v13, {srd(WS)}, s13 offen sc1
        s_mov_b64 exec, -1
        L_Q2:
        s_cmp_lt_u32 {sJ}, 9
        s_cbranch_scc1 L_O
        s_cmp_ge_u32 {sJ}, 11
        s_cbranch_scc1 L_R
        """)
        self.w32_voff(15, 11, 9216)
        a(f"s_lshl_b32 s10, {sF}, 6")
        self.w32_loads(W1, 15, W1S, 9216, "s10")
        a(f"s_add_u32 {sJ}, {sJ}, 16\ns_branch L_F")
        a("L_QG:")
        a(f"""
        s_cmp_lt_u32 {sJ}, 9
        s_cbranch_scc1 L_end
        s_cmp_ge_u32 {sJ}, 11
        s_cbranch_scc1 L_end
        s_waitcnt lgkmcnt(0)
        s_load_dword {sE}, s[{WS}:{WS+1}], {EPOCH}
        s_add_u32 {sJ}, {sJ}, 16
        """)
        self.masks()
        self.tagsetup()
        a("s_barrier\ns_barrier\ns_branch L_G")

        usedQ = list(self.used)
        a("L_O:")
        WO = 32
        a(f"""
        s_cmp_eq_u32 {sW}, 8
        s_cbranch_scc1 L_end
        v_lshrrev_b32 v11, 3, {vL}
        v_mul_u32_u24 v10, 1152, v11
        v_and_b32 v12, 7, {vL}
        v_lshl_add_u32 v10, v12, 4, v10
        s_lshl_b32 s9, {sX}, 3
        s_add_u32 s9, s9, {sW}
        s_mul_i32 s9, s9, {64*1152}
        s_lshl_b32 s8, {sJ}, 7
        s_add_u32 s9, s9, s8
        v_lshlrev_b32 v13, 4, v12
        s_lshl_b32 s14, {sX}, 9
        s_lshr_b32 s7, {sW}, 1
        s_lshl_b32 s7, s7, 7
        s_add_u32 s14, s14, s7
        s_add_u32 s14, s14, {MLP}
        v_lshlrev_b32 v14, 10, v12
        v_lshl_add_u32 v14, v11, 4, v14
        s_lshl_b32 s12, {sX}, 14
        s_lshr_b32 s7, {sW}, 2
        s_lshl_b32 s7, s7, 13
        s_add_u32 s12, s12, s7
        s_and_b32 s7, {sW}, 3
        s_lshl_b32 s7, s7, 8
        s_add_u32 s12, s12, s7
        s_add_u32 s12, s12, {OP}
        """)
        def wo_loads():
            for t in range(8):
                a(f"buffer_load_dwordx4 v[{WO+4*t}:{WO+4*t+3}], v10, {srd(WOS)}, s9 offen {nt}")
                if t < 7: a("s_add_u32 s9, s9, 9216")
        if not self.trigger: wo_loads()
        self.poll([f"buffer_load_dwordx4 v[16:19], v13, {srd(WS)}, s14 offen sc1"], [16], "s14", True, 24, sleep=2)
        if self.trigger: wo_loads()
        self.stamp(15)
        a(f"v_and_b32 v16, {sHI}, v16\nv_and_b32 v17, {sNM}, v17\nv_mov_b32 v18, v16")
        self.red3([18], "max")
        a(f"v_sub_f32 v16, v16, v18\nv_mul_f32 v16, {LOG2E}, v16\nv_exp_f32 v16, v16\nv_mul_f32 v17, v16, v17")
        self.red3([17])
        a("v_rcp_f32 v17, v17\nv_mul_f32 v15, v16, v17")
        a(f"""
        v_bfe_u32 v11, {vL}, 4, 1
        v_lshl_add_u32 v11, v11, 3, v12
        v_mul_u32_u24 v11, 17, v11
        v_lshrrev_b32 v13, 5, {vL}
        s_lshl_b32 s8, {sW}, 1
        v_add3_u32 v11, v11, v13, s8
        v_lshlrev_b32 v11, 4, v11
        v_lshrrev_b32 v13, 2, {vL}
        v_mul_u32_u24 v12, 17, v13
        v_and_b32 v10, 3, {vL}
        v_add_lshl_u32 v12, v12, v10, 4
        v_lshlrev_b32 v13, 4, v13
        s_mul_i32 s13, {sX}, 2304
        s_lshl_b32 s8, {sJ}, 8
        s_add_u32 s13, s13, s8
        s_add_u32 s13, s13, {HC}
        """)
        self.poll([f"buffer_load_dwordx4 v[16:19], v14, {srd(WS)}, s12 offen sc1",
                   f"buffer_load_dwordx4 v[20:23], v14, {srd(WS)}, s12 offen offset:128 sc1"], [16, 20], "s12", True, 24)
        self.stamp(16)
        O = [16 + k for k in range(8)]
        for r in O: a(f"v_and_b32 v{r}, {sNM}, v{r}")
        for r in O: a(f"v_mul_f32 v{r}, v15, v{r}")
        self.red3(O)
        for k in range(8): self.bbuild(O[k], 64 + 4 * k)
        for t in range(8):
            D = 24 + 4 * (t & 1)
            c = "0" if t < 2 else f"v[{D}:{D+3}]"
            a(f"v_mfma_f32_16x16x32_bf16 v[{D}:{D+3}], v[{WO+4*t}:{WO+4*t+3}], v[{64+4*t}:{64+4*t+3}], {c}")
        a("v_pk_add_f32 v[24:25], v[24:25], v[28:29]\nv_pk_add_f32 v[26:27], v[26:27], v[30:31]")
        a(f"""
        s_mov_b32 exec_lo, 0x00ff00ff
        s_mov_b32 exec_hi, 0xff00ff00
        ds_write_b128 v11, v[24:27] offset:{L_OL}
        s_mov_b64 exec, -1
        s_waitcnt lgkmcnt(0)
        s_barrier
        s_cmp_lg_u32 {sW}, 0
        s_cbranch_scc1 L_end
        """)
        for k in range(4):
            a(f"ds_read_b128 v[{16+4*k}:{19+4*k}], v12 offset:{L_OL + 64*k}")
        a("s_waitcnt lgkmcnt(2)")
        a("v_pk_add_f32 v[16:17], v[16:17], v[20:21]\nv_pk_add_f32 v[18:19], v[18:19], v[22:23]")
        a("s_waitcnt lgkmcnt(0)")
        a("v_pk_add_f32 v[24:25], v[24:25], v[28:29]\nv_pk_add_f32 v[26:27], v[26:27], v[30:31]")
        a("v_pk_add_f32 v[16:17], v[16:17], v[24:25]\nv_pk_add_f32 v[18:19], v[18:19], v[26:27]")
        for m in ("quad_perm:[1,0,3,2]", "quad_perm:[2,3,0,1]"):
            for r in range(16, 20): a(f"v_add_f32_dpp v{r}, v{r}, v{r} {m} {DPP}")
        self.tag(16)
        a(f"""
        s_mov_b32 exec_lo, 0x11111111
        s_mov_b32 exec_hi, 0x11111111
        buffer_store_dwordx4 v[16:19], v13, {srd(WS)}, s13 offen sc1
        """)
        self.stamp(17)
        self.end()

        self.used = list(usedQ)
        a("L_R:")
        a(f"""
        s_cmp_lg_u32 {sW}, 0
        s_cbranch_scc1 L_end
        s_mul_i32 s12, {sX}, 5
        s_add_u32 s12, s12, {sJ}
        s_sub_u32 s12, s12, 11
        s_cmp_ge_u32 s12, 36
        s_cbranch_scc1 L_end
        v_and_b32 v10, 7, {vL}
        v_mul_u32_u24 v10, 2304, v10
        v_bfe_u32 v11, {vL}, 3, 2
        v_lshl_add_u32 v10, v11, 4, v10
        s_lshl_b32 s11, s12, 6
        s_add_u32 s13, s11, {EP}
        s_add_u32 s11, s11, {HC}
        v_lshrrev_b32 v12, 5, {vL}
        v_mul_u32_u24 v12, {8*2304}, v12
        v_add_u32 v12, v12, v10
        """)
        a(f"""
        s_lshl_b32 s8, s12, 2
        v_add_u32 v13, s8, v11
        v_lshrrev_b32 v14, 3, v13
        v_and_b32 v13, 7, v13
        v_lshl_add_u32 v13, v14, 5, v13
        v_lshlrev_b32 v13, 1, v13
        """)
        for i in range(4): a(f"v_mov_b32 v{20+i}, 0")
        for i in range(4): a(f"buffer_load_short_d16_hi v{20+i}, v13, {srd(XS)}, 0 offen offset:{16*i}")
        self.poll([f"buffer_load_dwordx4 v[16:19], v10, {srd(WS)}, s11 offen sc1"], [16], "s11", False, 24, sleep=4)
        Hh = [16, 17, 18, 19]
        for r in Hh: a(f"v_and_b32 v{r}, {sNM}, v{r}")
        self.red3(Hh)
        self.rnd_pairs(Hh, 24)
        for k in range(4): a(f"v_add_f32 v{Hh[k]}, v{Hh[k]}, v{20+k}")
        self.rnd_pairs(Hh, 24)
        self.stamp(18)
        for k in range(1, 9): a(f"v_add_u32 v{100+k}, {k*16*2304}, v12")
        loads = [f"buffer_load_dwordx4 v[{32+4*k}:{35+4*k}], v{12 if k == 0 else 100+k}, {srd(WS)}, s13 offen sc1" for k in range(9)]
        self.poll(loads, [32 + 4 * k for k in range(9)], "s13", False, 24)
        self.stamp(19)
        for r in range(32, 68): a(f"v_and_b32 v{r}, {sNM}, v{r}")
        def padd(d, s):
            a(f"v_pk_add_f32 v[{d}:{d+1}], v[{d}:{d+1}], v[{s}:{s+1}]\nv_pk_add_f32 v[{d+2}:{d+3}], v[{d+2}:{d+3}], v[{s+2}:{s+3}]")
        padd(32, 36); padd(40, 44); padd(48, 52); padd(56, 60); padd(32, 40); padd(48, 56); padd(32, 64); padd(32, 48)
        Y = [32, 33, 34, 35]
        self.red3(Y)
        for i in range(4): a(f"v_mov_b32 v{36+i}, v{32+i}")
        for i in range(4): a(f"v_permlane32_swap_b32 v{32+i}, v{36+i}")
        for i in range(4): a(f"v_add_f32 v{32+i}, v{32+i}, v{36+i}")
        self.rnd_pairs(Y, 24)
        for k in range(4): a(f"v_add_f32 v{Y[k]}, v{Y[k]}, v{Hh[k]}")
        a("v_cvt_pk_bf16_f32 v24, v32, v33\nv_cvt_pk_bf16_f32 v25, v34, v35")
        a(f"""
        s_mov_b64 exec, 0x01010101
        buffer_store_short v24, v13, {srd(OUTS)}, 0 offen
        buffer_store_short_d16_hi v24, v13, {srd(OUTS)}, 0 offen offset:16
        buffer_store_short v25, v13, {srd(OUTS)}, 0 offen offset:32
        buffer_store_short_d16_hi v25, v13, {srd(OUTS)}, 0 offen offset:48
        s_cmp_lg_u32 s12, 0
        s_cbranch_scc1 L_Rend
        s_mov_b64 exec, 1
        v_mov_b32 v26, {EPOCH}
        buffer_store_dword v{vTB[0]}, v26, {srd(WS)}, 0 offen sc1
        L_Rend:
        """)
        self.stamp(20)
        self.end()
        a("L_end:\ns_endpgm")
        return hazard.pad(a.text())

def make(fn, **kw):
    g = G(**kw)
    body = g.build()
    open(fn, "w").write(single_file(body, 256, 768, LDS_BYTES, 168))

if __name__ == "__main__":
    make("k_base.s")
    make("k_stamp.s", stamps=True)
    make("k_trig.s", trigger=True)
    make("k_trig_stamp.s", trigger=True, stamps=True)
```
